```python
import torch

def _softmax(x, axis=-1):
    return torch.softmax(x, dim=axis)
def _gelu(x):
    return torch.nn.functional.gelu(x, approximate="tanh")
def _silu(x):
    return torch.nn.functional.silu(x)
def _sigmoid(x):
    return torch.sigmoid(x)
def _layernorm(x, axis=-1, eps=1e-5):
    m = x.mean(dim=axis, keepdim=True)
    v = x.var(dim=axis, keepdim=True, unbiased=False)
    return (x - m) / torch.sqrt(v + eps)
def _scatter_add(tgt, idx, src, axis=0):
    return tgt.clone().index_add_(axis, idx, src)
def _segment_sum(src, seg, n):
    out = torch.zeros((n,) + src.shape[1:], dtype=src.dtype)
    return out.index_add_(0, seg, src)
def _pad(x, pw):
    flat = tuple(v for pair in reversed(pw) for v in pair)
    return torch.nn.functional.pad(x, flat)

kernel_name = 'gather_scatter__edge_featured_mpnn_mpnn__graph'

def setup_inputs():

    _w = (lambda a: (lambda t: t.to(torch.bfloat16) if t.is_floating_point() else t)(torch.as_tensor(a)))
    N, deg, D, De = 10000, 32, 128, max(0, 1)
    E = N * deg
    H = 2 * D
    return {
        "x": _w((lambda *s: torch.randn(*s, dtype=torch.bfloat16) * 0.05)(N, D)),
        "e_attr": _w((lambda *s: torch.randn(*s, dtype=torch.bfloat16) * 1.6)(E, De)),
        "src": _w((lambda lo, hi, *s: torch.randint(lo, hi, s))(0, N, E).to(torch.int64)),
        "dst": _w((lambda lo, hi, *s: torch.randint(lo, hi, s))(0, N, E).to(torch.int64)),
        "w1": _w((lambda *s: torch.randn(*s, dtype=torch.bfloat16) * 1.6)(2 * D + De, H) * (1.0 / (2 * D + De) ** 0.5)),
        "b1": _w((lambda *s: torch.randn(*s, dtype=torch.bfloat16) * 0.8)(H) * 0.01),
        "w2": _w((lambda *s: torch.randn(*s, dtype=torch.bfloat16) * 0.05)(H, D) * (1.0 / H ** 0.5)),
        "b2": _w((lambda *s: torch.randn(*s, dtype=torch.bfloat16) * 0.05)(D) * 0.01),
    }

def reference(x, e_attr, src, dst, w1, b1, w2, b2):
    N, D = x.shape
    h_src = x[src]
    h_dst = x[dst]
    m_in = torch.concatenate([h_src, h_dst, e_attr], axis=-1)
    h = _silu(m_in @ w1 + b1)
    msg = h @ w2 + b2
    return _segment_sum(msg, dst, N)
```

```python
import sys
N, E, D, H = 10000, 320000, 128, 256
W = 16; C = E // W
P_OFF = 0;            P_SZ = N*H*2
B_OFF = P_OFF+P_SZ;   B_SZ = N*H*4
S_OFF = B_OFF+B_SZ;   S_SZ = E*8
L_OFF = S_OFF+S_SZ;   L_SZ = (N+1)*W*4
T_OFF = (L_OFF+L_SZ+255)//256*256; T_SZ = D*H*2
NG = (N+63)//64
NWG1 = W + 1 + NG
NWG2 = 256
LOG2E = 0xbfb8aa3b
NLN2 = 0xbf317218
out = []
def o(s): out.append("    " + s)
def lab(s): out.append(s + ":")
def srd(d, blo, off, size):
    o(f"s_add_u32 s{d}, s{blo}, {off}")
    o(f"s_addc_u32 s{d+1}, s{blo+1}, 0")
    o(f"s_mov_b32 s{d+2}, {size}")
    o(f"s_mov_b32 s{d+3}, 0x20000")
def kernargs():
    o("s_load_dwordx16 s[4:19], s[0:1], 0")
    o("s_load_dwordx4 s[20:23], s[0:1], 64")
    o("s_load_dwordx2 s[24:25], s[0:1], 80")
    o("s_waitcnt lgkmcnt(0)")
X, EA, SRC, DST, W1, B1, W2, B2, OUT, DBG, WS = 4, 6, 8, 10, 12, 14, 16, 18, 20, 22, 24

hdr = open('gather_scatter__edge_featured_mpnn_mpnn__graph.s.ref').read().split('\n')
lines = [l for l in hdr[:13] if l.startswith(';')][:12]
out += lines
out.append(f"; @launch kernel=prep_kernel grid=({NWG1},1,1) block=(1024,1,1) lds=40192")
out.append(f"; @launch kernel=main_kernel grid=({NWG2},1,1) block=(1024,1,1) lds=26112")
out.append('.amdgcn_target "amdgcn-amd-amdhsa--gfx950"')
out.append(".text")

out += [".globl prep_kernel", ".p2align 8", ".type prep_kernel,@function"]
lab("prep_kernel")
o(f"s_cmp_ge_u32 s2, {NWG1}")
o("s_cbranch_scc1 Lp_end")
kernargs()
o(f"s_cmp_lt_u32 s2, {W}")
o("s_cbranch_scc1 Lp_sort")
o(f"s_cmp_eq_u32 s2, {W}")
o("s_cbranch_scc1 Lp_tr")
o(f"s_sub_u32 s3, s2, {W+1}")
srd(28, X, 0, N*D*2)
srd(32, W1, 0, 257*H*2)
srd(36, WS, P_OFF, P_SZ)
srd(40, WS, B_OFF, B_SZ)
srd(44, B1, 0, H*2)
o("v_and_b32 v1, 63, v0")
o("v_lshrrev_b32 v2, 6, v0")
o("v_and_b32 v3, 31, v1")
o("v_lshrrev_b32 v4, 5, v1")
o("v_lshl_add_u32 v5, v2, 5, v3")
o("v_lshlrev_b32 v6, 12, v4")
o("v_lshl_add_u32 v6, v5, 1, v6")
o("v_lshrrev_b32 v7, 3, v2")
o("v_mul_u32_u24 v7, 65024, v7")
o("v_add_u32 v6, v6, v7")
for step in range(8):
    o(f"s_mov_b32 s50, {step*8192}")
    for j in range(8):
        o(f"buffer_load_ushort v{64+step*8+j}, v6, s[32:35], s50 offen offset:{j*512}")
o("v_lshlrev_b32 v7, 1, v5")
o("v_subrev_u32 v7, 512, v7")
o("buffer_load_ushort v8, v7, s[44:47], 0 offen")
o("v_readfirstlane_b32 s51, v2")
o("s_waitcnt vmcnt(0)")
for i in range(32): o(f"v_lshl_or_b32 v{64+i}, v{65+2*i}, 16, v{64+2*i}")
o("s_mov_b32 s52, 0x%x" % LOG2E)
for rt in range(2):
    o("s_lshl_b32 s53, s3, 6")
    if rt: o("s_add_u32 s53, s53, 32")
    o("v_add_u32 v9, s53, v3")
    o("v_lshlrev_b32 v9, 8, v9")
    o("v_lshl_add_u32 v9, v4, 4, v9")
    for step in range(8):
        o(f"buffer_load_dwordx4 v[{32+step*4}:{35+step*4}], v9, s[28:31], 0 offen offset:{step*32}")
    for i in range(16): o(f"v_mov_b32 v{16+i}, 0")
    o("s_waitcnt vmcnt(0)")
    for step in range(8):
        o(f"v_mfma_f32_32x32x16_bf16 v[16:31], v[{32+step*4}:{35+step*4}], v[{64+step*4}:{67+step*4}], v[16:31]")
    o("s_nop 15"); o("s_nop 3")
    o("v_lshl_add_u32 v10, v4, 2, s53")
    o("s_cmp_ge_u32 s51, 8")
    o(f"s_cbranch_scc1 Lp_base{rt}")
    o("v_lshlrev_b32 v11, 9, v10")
    o("v_lshl_add_u32 v11, v5, 1, v11")
    for i in range(16):
        o(f"v_mul_f32 v{16+i}, s52, v{16+i}")
    for i in range(16):
        o(f"v_cvt_pk_bf16_f32 v{16+i}, v{16+i}, v{16+i}")
    for i in range(16):
        r = (i//4)*8 + (i % 4)
        o(f"s_mov_b32 s54, {r*512}")
        o(f"buffer_store_short v{16+i}, v11, s[36:39], s54 offen")
    o(f"s_branch Lp_next{rt}")
    lab(f"Lp_base{rt}")
    o("v_lshlrev_b32 v12, 16, v8")
    o("v_lshlrev_b32 v11, 10, v10")
    o("v_lshl_add_u32 v11, v5, 2, v11")
    o("v_subrev_u32 v11, 1024, v11")
    for i in range(16):
        o(f"v_add_f32 v{16+i}, v{16+i}, v12")
        o(f"v_mul_f32 v{16+i}, s52, v{16+i}")
    for i in range(16):
        r = (i//4)*8 + (i % 4)
        o(f"s_mov_b32 s54, {r*1024}")
        o(f"buffer_store_dword v{16+i}, v11, s[40:43], s54 offen")
    lab(f"Lp_next{rt}")
o("s_endpgm")
lab("Lp_tr")
srd(28, W2, 0, H*D*2)
srd(32, WS, T_OFF, T_SZ)
o("v_and_b32 v1, 127, v0")
o("v_lshrrev_b32 v2, 7, v0")
o("v_lshlrev_b32 v3, 13, v2")
o("v_lshl_add_u32 v3, v1, 1, v3")
for j in range(32):
    if j % 16 == 0: o(f"s_mov_b32 s50, {j*256}")
    o(f"buffer_load_ushort v{16+j}, v3, s[28:31], s50 offen offset:{(j%16)*256}")
o("v_lshlrev_b32 v4, 9, v1")
o("v_lshl_add_u32 v4, v2, 6, v4")
o("s_waitcnt vmcnt(0)")
for i in range(16): o(f"v_lshl_or_b32 v{16+i}, v{17+2*i}, 16, v{16+2*i}")
for q in range(4):
    o(f"buffer_store_dwordx4 v[{16+4*q}:{19+4*q}], v4, s[32:35], 0 offen offset:{q*16}")
o("s_endpgm")
lab("Lp_sort")
srd(28, DST, 0, E*4)
srd(32, SRC, 0, E*4)
srd(36, EA, 0, E*2)
srd(40, WS, S_OFF, S_SZ)
srd(44, WS, L_OFF, L_SZ)
NI = (C + 1023)//1024
LASTN = C - (NI-1)*1024
o("v_mov_b32 v100, 0"); o("v_mov_b32 v101, 0")
o("v_mul_u32_u24 v1, 40, v0")
o("v_cmp_gt_u32 vcc, 1000, v0")
o("s_and_saveexec_b64 s[60:61], vcc")
for q in range(5): o(f"ds_write_b64 v1, v[100:101] offset:{q*8}")
o("s_mov_b64 exec, s[60:61]")
o(f"s_mul_i32 s50, s2, {C*4}")
o("v_lshlrev_b32 v2, 2, v0")
o("v_lshlrev_b32 v3, 1, v0")
o(f"v_cmp_gt_u32 vcc, {LASTN}, v0")
o("s_mov_b64 s[62:63], vcc")
def masked(i, f):
    if i == NI-1:
        o("s_mov_b64 exec, s[62:63]"); f(); o("s_mov_b64 exec, -1")
    else: f()
for i in range(NI):
    o(f"s_add_u32 s51, s50, {i*4096}")
    masked(i, lambda: o(f"buffer_load_dword v{20+i}, v2, s[28:31], s51 offen"))
o("v_mov_b32 v5, 1")
o("s_waitcnt lgkmcnt(0)")
o("s_barrier")
for i in range(NI):
    o(f"s_waitcnt vmcnt({NI-1-i})")
    o(f"v_lshlrev_b32 v{20+i}, 2, v{20+i}")
    masked(i, lambda: o(f"ds_add_rtn_u32 v{40+i}, v{20+i}, v5"))
o("s_lshr_b32 s52, s50, 1")
for i in range(NI):
    o(f"s_add_u32 s51, s50, {i*4096}")
    o(f"s_add_u32 s53, s52, {i*2048}")
    masked(i, lambda: (o(f"buffer_load_dword v{60+i}, v2, s[32:35], s51 offen"),
                       o(f"buffer_load_ushort v{80+i}, v3, s[36:39], s53 offen")))
o("s_waitcnt lgkmcnt(0)")
o("s_barrier")
o("v_mov_b32 v6, 0")
o("v_cmp_gt_u32 vcc, 1000, v0")
o("s_and_saveexec_b64 s[60:61], vcc")
for q in range(5): o(f"ds_read_b64 v[{100+2*q}:{101+2*q}], v1 offset:{q*8}")
o("s_waitcnt lgkmcnt(0)")
for i in range(10):
    o(f"v_mov_b32 v7, v{100+i}")
    o(f"v_mov_b32 v{100+i}, v6")
    o("v_add_u32 v6, v6, v7")
o("s_mov_b64 exec, s[60:61]")
o("v_mov_b32 v8, v6")
def scan64(r, rows_only=False):
    for sh in (1, 2, 4, 8):
        o("s_nop 1")
        o(f"v_add_u32_dpp v{r}, v{r}, v{r} row_shr:{sh} row_mask:0xf bank_mask:0xf bound_ctrl:0")
    if not rows_only:
        o("s_nop 1")
        o(f"v_add_u32_dpp v{r}, v{r}, v{r} row_bcast:15 row_mask:0xa bank_mask:0xf")
        o("s_nop 1")
        o(f"v_add_u32_dpp v{r}, v{r}, v{r} row_bcast:31 row_mask:0xc bank_mask:0xf")
scan64(8)
o("v_lshrrev_b32 v9, 6, v0")
o("v_lshlrev_b32 v10, 2, v9")
o("v_and_b32 v11, 63, v0")
o("v_cmp_eq_u32 vcc, 63, v11")
o("s_and_saveexec_b64 s[60:61], vcc")
o("ds_write_b32 v10, v8 offset:40000")
o("s_mov_b64 exec, s[60:61]")
o("v_sub_u32 v8, v8, v6")
o("s_waitcnt lgkmcnt(0)")
o("s_barrier")
o("v_and_b32 v12, 15, v0")
o("v_lshlrev_b32 v13, 2, v12")
o("ds_read_b32 v14, v13 offset:40000")
o("v_cmp_gt_u32 vcc, v9, v12")
o("s_waitcnt lgkmcnt(0)")
o("v_cndmask_b32 v14, 0, v14, vcc")
scan64(14, rows_only=True)
o("s_nop 1")
o("v_readlane_b32 s54, v14, 15")
o("s_nop 3")
o("v_add_u32 v8, s54, v8")
o(f"s_mul_i32 s55, s2, {C}")
o("v_cmp_gt_u32 vcc, 1000, v0")
o("s_and_saveexec_b64 s[60:61], vcc")
for i in range(10): o(f"v_add_u32 v{100+i}, v{100+i}, v8")
for q in range(5): o(f"ds_write_b64 v1, v[{100+2*q}:{101+2*q}] offset:{q*8}")
o(f"v_mul_u32_u24 v15, {10*W*4}, v0")
o(f"s_lshl_b32 s56, s2, 2")
for i in range(10):
    o(f"v_add_u32 v{100+i}, s55, v{100+i}")
    o(f"buffer_store_dword v{100+i}, v15, s[44:47], s56 offen offset:{i*W*4}")
o("s_mov_b64 exec, s[60:61]")
o(f"s_add_u32 s57, s55, {C}")
o("v_mov_b32 v16, s57")
o(f"v_mov_b32 v17, {N*W*4}")
o("v_cmp_eq_u32 vcc, 0, v0")
o("s_and_saveexec_b64 s[60:61], vcc")
o("buffer_store_dword v16, v17, s[44:47], s56 offen")
o("s_mov_b64 exec, s[60:61]")
o("s_waitcnt lgkmcnt(0)")
o("s_barrier")
for i in range(NI):
    masked(i, lambda: o(f"ds_read_b32 v{100+i}, v{20+i}"))
o("s_waitcnt vmcnt(0)")
for i in range(NI):
    o(f"s_waitcnt lgkmcnt({min(15,NI-1-i)})")
    o(f"v_add3_u32 v{100+i}, v{100+i}, v{40+i}, s55")
    o(f"v_lshlrev_b32 v{100+i}, 3, v{100+i}")
    o(f"v_lshlrev_b32 v{60+i}, 9, v{60+i}")
    o(f"v_lshlrev_b32 v{80+i}, 16, v{80+i}")
    o(f"v_mov_b32 v{124+(i%2)*2}, v{60+i}")
    o(f"v_mov_b32 v{125+(i%2)*2}, v{80+i}")
    masked(i, lambda: o(f"buffer_store_dwordx2 v[{124+(i%2)*2}:{125+(i%2)*2}], v{100+i}, s[40:43], 0 offen"))
lab("Lp_end")
o("s_endpgm")

ROWB = 528
DEG_OFF = 48*ROWB
CTR_OFF = DEG_OFF + 48*4
out += [".globl main_kernel", ".p2align 8", ".type main_kernel,@function"]
lab("main_kernel")
o(f"s_cmp_ge_u32 s2, {NWG2}")
o("s_cbranch_scc1 Lm_end")
kernargs()
srd(28, WS, P_OFF, P_SZ)
srd(32, WS, B_OFF, B_SZ)
srd(36, WS, S_OFF, S_SZ)
srd(40, WS, L_OFF, L_SZ)
srd(44, WS, T_OFF, T_SZ)
srd(48, OUT, 0, N*D*2)
srd(52, W1, 0, 257*H*2)
srd(56, B2, 0, D*2)
o("s_mul_i32 s60, s2, 625"); o("s_lshr_b32 s60, s60, 4")
o("s_add_u32 s61, s2, 1"); o("s_mul_i32 s61, s61, 625"); o("s_lshr_b32 s61, s61, 4")
o("s_sub_u32 s61, s61, s60")
o("v_and_b32 v1, 63, v0")
o("v_lshlrev_b32 v2, 3, v1")
o("v_lshlrev_b32 v3, 4, v1")
o("v_lshlrev_b32 v4, 2, v1")
o(f"s_mov_b32 s62, {256*512}")
o("buffer_load_dwordx2 v[6:7], v2, s[52:55], s62 offen")
o("v_mov_b32 v8, 0"); o(f"v_mov_b32 v9, {CTR_OFF}")
o("v_cmp_eq_u32 vcc, 0, v0")
o("s_and_saveexec_b64 s[64:65], vcc")
o("ds_write_b32 v9, v8")
o("s_mov_b64 exec, s[64:65]")
o("s_mov_b32 s63, 0x%x" % LOG2E)
o("s_waitcnt vmcnt(0) lgkmcnt(0)")
o("v_lshlrev_b32 v10, 16, v6"); o("v_and_b32 v11, 0xffff0000, v6")
o("v_lshlrev_b32 v12, 16, v7"); o("v_and_b32 v13, 0xffff0000, v7")
for i in range(4): o(f"v_mul_f32 v{10+i}, s63, v{10+i}")
o("v_mov_b32 v8, 1")
o("s_barrier")
lab("Lm_node")
o("s_mov_b64 exec, 1")
o("ds_add_rtn_u32 v14, v9, v8")
o("s_waitcnt lgkmcnt(0)")
o("v_readfirstlane_b32 s66, v14")
o("s_mov_b64 exec, -1")
o("s_cmp_ge_u32 s66, s61")
o("s_cbranch_scc1 Lm_done")
o("s_add_u32 s67, s60, s66")
o(f"s_lshl_b32 s68, s67, {(W*4).bit_length()-1}")
o("buffer_load_dword v15, v4, s[40:43], s68 offen")
o("s_lshl_b32 s68, s67, 10")
o("buffer_load_dwordx4 v[16:19], v3, s[32:35], s68 offen")
for i in range(4): o(f"v_mov_b32 v{20+i}, 0")
o("s_mov_b32 s69, 0")
o("s_mov_b32 s70, 0")
o("s_mov_b32 s71, 0")
o("s_waitcnt vmcnt(0)")
lab("Lm_seg")
o("v_readlane_b32 s72, v15, s70")
o(f"s_add_u32 s74, s70, {W}")
o("v_readlane_b32 s73, v15, s74")
lab("Lm_seg_in")
o("s_sub_u32 s74, s73, s72")
o("s_cmp_eq_u32 s74, 0")
o("s_cbranch_scc1 Lm_seg_next")
o(f"s_cmp_gt_u32 s74, {C}")
o("s_cbranch_scc1 Lm_seg_next")
o("s_sub_u32 s75, 64, s69")
o("s_min_u32 s74, s74, s75")
o("s_bfm_b64 s[76:77], s74, s69")
o("s_cmp_eq_u32 s74, 64")
o("s_cselect_b64 s[76:77], -1, s[76:77]")
o("s_sub_u32 s75, s72, s69")
o("s_lshl_b32 s75, s75, 3")
o("v_add_u32 v26, s75, v2")
o("s_mov_b64 exec, s[76:77]")
o("buffer_load_dwordx2 v[24:25], v26, s[36:39], 0 offen")
o("s_mov_b64 exec, -1")
o("s_add_u32 s69, s69, s74")
o("s_add_u32 s72, s72, s74")
o("s_add_u32 s71, s71, s74")
o("s_cmp_lt_u32 s69, 64")
o("s_cbranch_scc1 Lm_seg_in")
o("s_getpc_b64 s[80:81]")
o("s_add_u32 s80, s80, 12"); o("s_addc_u32 s81, s81, 0")
o("s_branch Lm_batch")
o("s_mov_b32 s69, 0")
o("s_branch Lm_seg_in")
lab("Lm_seg_next")
o("s_add_u32 s70, s70, 1")
o(f"s_cmp_lt_u32 s70, {W}")
o("s_cbranch_scc1 Lm_seg")
o("s_getpc_b64 s[80:81]")
o("s_add_u32 s80, s80, 12"); o("s_addc_u32 s81, s81, 0")
o("s_branch Lm_batch")
o("s_mov_b32 s68, 0x%x" % NLN2)
for i in range(4): o(f"v_mul_f32 v{20+i}, s68, v{20+i}")
o("v_cvt_pk_bf16_f32 v20, v20, v21")
o("v_cvt_pk_bf16_f32 v21, v22, v23")
o(f"s_mul_i32 s68, s66, {ROWB}")
o("v_add_u32 v26, s68, v2")
o("ds_write_b64 v26, v[20:21]")
o("s_lshl_b32 s68, s66, 2")
o(f"v_mov_b32 v26, s68")
o("v_mov_b32 v27, s71")
o(f"ds_write_b32 v26, v27 offset:{DEG_OFF}")
o("s_branch Lm_node")
lab("Lm_batch")
o("s_waitcnt vmcnt(0)")
o("s_mov_b32 s82, 0")
lab("Lm_grp")
o("s_cmp_ge_u32 s82, s69")
o("s_cbranch_scc1 Lm_ret")
G = 8
for k in range(G):
    o(f"s_add_u32 s83, s82, {k}")
    o(f"s_min_u32 s83, s83, 63")
    o(f"v_readlane_b32 s{84+k}, v24, s83")
    o(f"v_readlane_b32 s{92+k}, v25, s83")
o("s_nop 4")
for k in range(G):
    o(f"s_add_u32 s83, s82, {k}")
    o("s_cmp_ge_u32 s83, s69")
    o("s_cbranch_scc1 Lm_grp_w")
    o(f"buffer_load_dwordx2 v[{32+2*k}:{33+2*k}], v2, s[28:31], s{84+k} offen")
lab("Lm_grp_w")
o("s_waitcnt vmcnt(0)")
for k in range(G):
    p0, p1 = 32+2*k, 33+2*k
    o(f"v_lshlrev_b32 v48, 16, v{p0}"); o(f"v_and_b32 v49, 0xffff0000, v{p0}")
    o(f"v_lshlrev_b32 v50, 16, v{p1}"); o(f"v_and_b32 v51, 0xffff0000, v{p1}")
    for i in range(4): o(f"v_fma_f32 v{52+i}, s{92+k}, v{10+i}, v{16+i}")
    for i in range(4): o(f"v_add_f32 v{48+i}, v{48+i}, v{52+i}")
    for i in range(4): o(f"v_exp_f32 v{52+i}, v{48+i}")
    for i in range(4): o(f"v_add_f32 v{52+i}, 1.0, v{52+i}")
    for i in range(4): o(f"v_rcp_f32 v{52+i}, v{52+i}")
    for i in range(4): o(f"v_fmac_f32 v{20+i}, v{48+i}, v{52+i}")
    o("s_add_u32 s82, s82, 1")
    o("s_cmp_ge_u32 s82, s69")
    o("s_cbranch_scc1 Lm_ret")
o("s_branch Lm_grp")
lab("Lm_ret")
o("s_setpc_b64 s[80:81]")
lab("Lm_done")
o("s_waitcnt lgkmcnt(0)")
o("s_barrier")
o("v_lshrrev_b32 v5, 6, v0"); o("s_nop 1")
o("v_readfirstlane_b32 s66, v5")
o("v_and_b32 v6, 15, v1")
o("v_lshrrev_b32 v7, 4, v1")
lab("Lm_tile")
o("s_cmp_ge_u32 s66, 24")
o("s_cbranch_scc1 Lm_end")
o("s_lshr_b32 s67, s66, 3")
o("s_and_b32 s68, s66, 7")
o("s_lshl_b32 s69, s68, 4")
o("v_add_u32 v8, s69, v6")
o("v_lshlrev_b32 v9, 9, v8")
o("v_lshl_add_u32 v9, v7, 4, v9")
for st in range(8):
    o(f"buffer_load_dwordx4 v[{32+4*st}:{35+4*st}], v9, s[44:47], 0 offen offset:{st*64}")
o("v_lshlrev_b32 v10, 1, v8")
o("buffer_load_ushort v11, v10, s[56:59], 0 offen")
o("s_lshl_b32 s69, s67, 4")
o("v_add_u32 v12, s69, v6")
o(f"v_mul_u32_u24 v12, {ROWB}, v12")
o("v_lshl_add_u32 v12, v7, 4, v12")
for st in range(8):
    o(f"ds_read_b128 v[{64+4*st}:{67+4*st}], v12 offset:{st*64}")
o("v_lshl_add_u32 v13, v7, 2, s69")
o("v_lshlrev_b32 v14, 2, v13")
o(f"ds_read_b128 v[24:27], v14 offset:{DEG_OFF}")
for i in range(4): o(f"v_mov_b32 v{20+i}, 0")
o("s_waitcnt vmcnt(0) lgkmcnt(0)")
for st in range(8):
    o(f"v_mfma_f32_16x16x32_bf16 v[20:23], v[{64+4*st}:{67+4*st}], v[{32+4*st}:{35+4*st}], v[20:23]")
o("v_lshlrev_b32 v11, 16, v11")
o("s_nop 6")
for i in range(4):
    o(f"v_cvt_f32_u32 v{24+i}, v{24+i}")
    o(f"v_fma_f32 v{20+i}, v{24+i}, v11, v{20+i}")
    o(f"v_cvt_pk_bf16_f32 v{20+i}, v{20+i}, v{20+i}")
o("v_add_u32 v15, s60, v13")
o("v_lshlrev_b32 v15, 8, v15")
o("v_add_u32 v15, v15, v10"); o("v_mov_b32 v18, 0x7fff0000")
for i in range(4):
    o(f"v_add_u32 v16, {i}, v13")
    o("v_cmp_gt_u32 vcc, s61, v16")
    o("s_nop 1")
    o("v_cndmask_b32 v17, v18, v15, vcc")
    o(f"buffer_store_short v{20+i}, v17, s[48:51], 0 offen offset:{i*256}")
o("s_add_u32 s66, s66, 16")
o("s_branch Lm_tile")
lab("Lm_end")
o("s_endpgm")

out.append('.section .rodata,"a"')
for k in ("prep_kernel", "main_kernel"):
    out += [".p2align 6", f".amdhsa_kernel {k}",
            "  .amdhsa_next_free_vgpr 128", "  .amdhsa_next_free_sgpr 102",
            "  .amdhsa_accum_offset 128", "  .amdhsa_group_segment_fixed_size 0",
            "  .amdhsa_kernarg_size 88", "  .amdhsa_user_sgpr_count 2",
            "  .amdhsa_user_sgpr_kernarg_segment_ptr 1",
            "  .amdhsa_system_sgpr_workgroup_id_x 1", ".end_amdhsa_kernel"]
dst = sys.argv[1] if len(sys.argv) > 1 else 'gather_scatter__edge_featured_mpnn_mpnn__graph.s'
open(dst, 'w').write("\n".join(out) + "\n")
```

```python
import sys
N, E, D, H = 10000, 320000, 128, 256
W = 32; C = E // W; LP = 10240
P_OFF = 0;            P_SZ = N*H*2
B_OFF = P_OFF+P_SZ;   B_SZ = N*H*4
S_OFF = B_OFF+B_SZ;   S_SZ = E*8
L_OFF = S_OFF+S_SZ;   L_SZ = W*LP*4
T_OFF = (L_OFF+L_SZ+255)//256*256; T_SZ = D*H*2
NG = (N+63)//64
NWG1 = W + 1 + NG
NWG2 = 256
LOG2E = 0xbfb8aa3b
NLN2 = 0xbf317218
out = []
def o(s): out.append("    " + s)
def lab(s): out.append(s + ":")
def srd(d, blo, off, size):
    o(f"s_add_u32 s{d}, s{blo}, {off}")
    o(f"s_addc_u32 s{d+1}, s{blo+1}, 0")
    o(f"s_mov_b32 s{d+2}, {size}")
    o(f"s_mov_b32 s{d+3}, 0x20000")
def kernargs():
    o("s_load_dwordx16 s[4:19], s[0:1], 0")
    o("s_load_dwordx4 s[20:23], s[0:1], 64")
    o("s_load_dwordx2 s[24:25], s[0:1], 80")
    o("s_waitcnt lgkmcnt(0)")
X, EA, SRC, DST, W1, B1, W2, B2, OUT, DBG, WS = 4, 6, 8, 10, 12, 14, 16, 18, 20, 22, 24

hdr = open('gather_scatter__edge_featured_mpnn_mpnn__graph.s.ref').read().split('\n')
lines = [l for l in hdr[:13] if l.startswith(';')][:12]
out += lines
out.append(f"; @launch kernel=prep_kernel grid=({NWG1},1,1) block=(1024,1,1) lds=120320")
out.append(f"; @launch kernel=main_kernel grid=({NWG2},1,1) block=(1024,1,1) lds=33792")
out.append('.amdgcn_target "amdgcn-amd-amdhsa--gfx950"')
out.append(".text")

out += [".globl prep_kernel", ".p2align 8", ".type prep_kernel,@function"]
lab("prep_kernel")
o(f"s_cmp_ge_u32 s2, {NWG1}")
o("s_cbranch_scc1 Lp_end")
kernargs()
o(f"s_cmp_lt_u32 s2, {W}")
o("s_cbranch_scc1 Lp_sort")
o(f"s_cmp_eq_u32 s2, {W}")
o("s_cbranch_scc1 Lp_tr")
o(f"s_sub_u32 s3, s2, {W+1}")
srd(28, X, 0, N*D*2)
srd(32, W1, 0, 257*H*2)
srd(36, WS, P_OFF, P_SZ)
srd(40, WS, B_OFF, B_SZ)
srd(44, B1, 0, H*2)
o("v_and_b32 v1, 63, v0")
o("v_lshrrev_b32 v2, 6, v0")
o("v_and_b32 v3, 31, v1")
o("v_lshrrev_b32 v4, 5, v1")
o("v_lshl_add_u32 v5, v2, 5, v3")
o("v_lshlrev_b32 v6, 12, v4")
o("v_lshl_add_u32 v6, v5, 1, v6")
o("v_lshrrev_b32 v7, 3, v2")
o("v_mul_u32_u24 v7, 65024, v7")
o("v_add_u32 v6, v6, v7")
for step in range(8):
    o(f"s_mov_b32 s50, {step*8192}")
    for j in range(8):
        o(f"buffer_load_ushort v{64+step*8+j}, v6, s[32:35], s50 offen offset:{j*512}")
o("v_lshlrev_b32 v7, 1, v5")
o("v_subrev_u32 v7, 512, v7")
o("buffer_load_ushort v8, v7, s[44:47], 0 offen")
o("v_readfirstlane_b32 s51, v2")
o("s_waitcnt vmcnt(0)")
for i in range(32): o(f"v_lshl_or_b32 v{64+i}, v{65+2*i}, 16, v{64+2*i}")
o("s_mov_b32 s52, 0x%x" % LOG2E)
for rt in range(2):
    o("s_lshl_b32 s53, s3, 6")
    if rt: o("s_add_u32 s53, s53, 32")
    o("v_add_u32 v9, s53, v3")
    o("v_lshlrev_b32 v9, 8, v9")
    o("v_lshl_add_u32 v9, v4, 4, v9")
    for step in range(8):
        o(f"buffer_load_dwordx4 v[{32+step*4}:{35+step*4}], v9, s[28:31], 0 offen offset:{step*32}")
    for i in range(16): o(f"v_mov_b32 v{16+i}, 0")
    o("s_waitcnt vmcnt(0)")
    for step in range(8):
        o(f"v_mfma_f32_32x32x16_bf16 v[16:31], v[{32+step*4}:{35+step*4}], v[{64+step*4}:{67+step*4}], v[16:31]")
    o("s_nop 15"); o("s_nop 3")
    o("v_lshl_add_u32 v10, v4, 2, s53")
    o("s_cmp_ge_u32 s51, 8")
    o(f"s_cbranch_scc1 Lp_base{rt}")
    o("v_lshlrev_b32 v11, 9, v10")
    o("v_lshl_add_u32 v11, v5, 1, v11")
    for i in range(16):
        o(f"v_mul_f32 v{16+i}, s52, v{16+i}")
    for i in range(16):
        o(f"v_cvt_pk_bf16_f32 v{16+i}, v{16+i}, v{16+i}")
    for i in range(16):
        r = (i//4)*8 + (i % 4)
        o(f"s_mov_b32 s54, {r*512}")
        o(f"buffer_store_short v{16+i}, v11, s[36:39], s54 offen")
    o(f"s_branch Lp_next{rt}")
    lab(f"Lp_base{rt}")
    o("v_lshlrev_b32 v12, 16, v8")
    o("v_lshlrev_b32 v11, 10, v10")
    o("v_lshl_add_u32 v11, v5, 2, v11")
    o("v_subrev_u32 v11, 1024, v11")
    for i in range(16):
        o(f"v_add_f32 v{16+i}, v{16+i}, v12")
        o(f"v_mul_f32 v{16+i}, s52, v{16+i}")
    for i in range(16):
        r = (i//4)*8 + (i % 4)
        o(f"s_mov_b32 s54, {r*1024}")
        o(f"buffer_store_dword v{16+i}, v11, s[40:43], s54 offen")
    lab(f"Lp_next{rt}")
o("s_endpgm")
lab("Lp_tr")
srd(28, W2, 0, H*D*2)
srd(32, WS, T_OFF, T_SZ)
o("v_and_b32 v1, 127, v0")
o("v_lshrrev_b32 v2, 7, v0")
o("v_lshlrev_b32 v3, 13, v2")
o("v_lshl_add_u32 v3, v1, 1, v3")
for j in range(32):
    if j % 16 == 0: o(f"s_mov_b32 s50, {j*256}")
    o(f"buffer_load_ushort v{16+j}, v3, s[28:31], s50 offen offset:{(j%16)*256}")
o("v_lshlrev_b32 v4, 9, v1")
o("v_lshl_add_u32 v4, v2, 6, v4")
o("s_waitcnt vmcnt(0)")
for i in range(16): o(f"v_lshl_or_b32 v{16+i}, v{17+2*i}, 16, v{16+2*i}")
for q in range(4):
    o(f"buffer_store_dwordx4 v[{16+4*q}:{19+4*q}], v4, s[32:35], 0 offen offset:{q*16}")
o("s_endpgm")
lab("Lp_sort")
srd(28, DST, 0, E*4)
srd(32, SRC, 0, E*4)
srd(36, EA, 0, E*2)
srd(40, WS, S_OFF, S_SZ)
srd(44, WS, L_OFF, L_SZ)
NI = (C + 1023)//1024
LASTN = C - (NI-1)*1024
o("v_mov_b32 v100, 0"); o("v_mov_b32 v101, 0")
o("v_mul_u32_u24 v1, 40, v0")
o("v_cmp_gt_u32 vcc, 1000, v0")
o("s_and_saveexec_b64 s[60:61], vcc")
for q in range(5): o(f"ds_write_b64 v1, v[100:101] offset:{q*8}")
o("s_mov_b64 exec, s[60:61]")
o(f"s_mul_i32 s50, s2, {C*4}")
o("v_lshlrev_b32 v2, 2, v0")
o("v_lshlrev_b32 v3, 1, v0")
o(f"v_cmp_gt_u32 vcc, {LASTN}, v0")
o("s_mov_b64 s[62:63], vcc")
def masked(i, f):
    if i == NI-1:
        o("s_mov_b64 exec, s[62:63]"); f(); o("s_mov_b64 exec, -1")
    else: f()
for i in range(NI):
    o(f"s_add_u32 s51, s50, {i*4096}")
    masked(i, lambda: o(f"buffer_load_dword v{20+i}, v2, s[28:31], s51 offen"))
o("v_mov_b32 v5, 1")
o("s_waitcnt lgkmcnt(0)")
o("s_barrier")
for i in range(NI):
    o(f"s_waitcnt vmcnt({NI-1-i})")
    o(f"v_lshlrev_b32 v{20+i}, 2, v{20+i}")
    masked(i, lambda: o(f"ds_add_rtn_u32 v{40+i}, v{20+i}, v5"))
o("s_lshr_b32 s52, s50, 1")
for i in range(NI):
    o(f"s_add_u32 s51, s50, {i*4096}")
    o(f"s_add_u32 s53, s52, {i*2048}")
    masked(i, lambda: (o(f"buffer_load_dword v{30+i}, v2, s[32:35], s51 offen"),
                       o(f"buffer_load_ushort v{80+i}, v3, s[36:39], s53 offen")))
o("s_waitcnt lgkmcnt(0)")
o("s_barrier")
o("v_mov_b32 v6, 0")
o("v_cmp_gt_u32 vcc, 1000, v0")
o("s_and_saveexec_b64 s[60:61], vcc")
for q in range(5): o(f"ds_read_b64 v[{100+2*q}:{101+2*q}], v1 offset:{q*8}")
o("s_waitcnt lgkmcnt(0)")
for i in range(10):
    o(f"v_mov_b32 v7, v{100+i}")
    o(f"v_mov_b32 v{100+i}, v6")
    o("v_add_u32 v6, v6, v7")
o("s_mov_b64 exec, s[60:61]")
o("v_mov_b32 v8, v6")
def scan64(r, rows_only=False):
    for sh in (1, 2, 4, 8):
        o("s_nop 1")
        o(f"v_add_u32_dpp v{r}, v{r}, v{r} row_shr:{sh} row_mask:0xf bank_mask:0xf bound_ctrl:0")
    if not rows_only:
        o("s_nop 1")
        o(f"v_add_u32_dpp v{r}, v{r}, v{r} row_bcast:15 row_mask:0xa bank_mask:0xf")
        o("s_nop 1")
        o(f"v_add_u32_dpp v{r}, v{r}, v{r} row_bcast:31 row_mask:0xc bank_mask:0xf")
scan64(8)
o("v_lshrrev_b32 v9, 6, v0")
o("v_lshlrev_b32 v10, 2, v9")
o("v_and_b32 v11, 63, v0")
o("v_cmp_eq_u32 vcc, 63, v11")
o("s_and_saveexec_b64 s[60:61], vcc")
o("ds_write_b32 v10, v8 offset:40000")
o("s_mov_b64 exec, s[60:61]")
o("v_sub_u32 v8, v8, v6")
o("s_waitcnt lgkmcnt(0)")
o("s_barrier")
o("v_and_b32 v12, 15, v0")
o("v_lshlrev_b32 v13, 2, v12")
o("ds_read_b32 v14, v13 offset:40000")
o("v_cmp_gt_u32 vcc, v9, v12")
o("s_waitcnt lgkmcnt(0)")
o("v_cndmask_b32 v14, 0, v14, vcc")
scan64(14, rows_only=True)
o("s_nop 1")
o("v_readlane_b32 s54, v14, 15")
o("s_nop 3")
o("v_add_u32 v8, s54, v8")
o(f"s_mul_i32 s55, s2, {C}")
o("v_cmp_gt_u32 vcc, 1000, v0")
o("s_and_saveexec_b64 s[60:61], vcc")
for i in range(10): o(f"v_add_u32 v{100+i}, v{100+i}, v8")
for q in range(5): o(f"ds_write_b64 v1, v[{100+2*q}:{101+2*q}] offset:{q*8}")
o(f"s_mul_i32 s56, s2, {LP*4}")
for q in range(5):
    o(f"v_add_u32 v{100+2*q}, s55, v{100+2*q}")
    o(f"v_add_u32 v{101+2*q}, s55, v{101+2*q}")
    o(f"buffer_store_dwordx2 v[{100+2*q}:{101+2*q}], v1, s[44:47], s56 offen offset:{q*8}")
o("s_mov_b64 exec, s[60:61]")
o(f"s_add_u32 s57, s55, {C}")
o("v_mov_b32 v16, s57")
o(f"v_mov_b32 v17, {N*4}")
o("v_cmp_eq_u32 vcc, 0, v0")
o("s_and_saveexec_b64 s[60:61], vcc")
o("buffer_store_dword v16, v17, s[44:47], s56 offen")
o("s_mov_b64 exec, s[60:61]")
o("s_waitcnt lgkmcnt(0)")
o("s_barrier")
for i in range(NI):
    masked(i, lambda: o(f"ds_read_b32 v{100+i}, v{20+i}"))
o("s_waitcnt vmcnt(0)")
for i in range(NI):
    o(f"s_waitcnt lgkmcnt({min(15,NI-1-i)})")
    o(f"v_add_lshl_u32 v{100+i}, v{100+i}, v{40+i}, 3")
    o(f"v_lshlrev_b32 v{60+2*i}, 9, v{30+i}")
    o(f"v_lshlrev_b32 v{61+2*i}, 16, v{80+i}")
    masked(i, lambda: o(f"ds_write_b64 v{100+i}, v[{60+2*i}:{61+2*i}] offset:40320"))
o("s_waitcnt lgkmcnt(0)")
o("s_barrier")
o("v_lshlrev_b32 v2, 4, v0")
o(f"s_mul_i32 s56, s2, {C*8}")
o("v_add_u32 v3, 40320, v2")
o("v_add_u32 v4, 0x8000, v3"); o("v_add_u32 v5, 0x8000, v4")
o(f"v_cmp_gt_u32 vcc, {(C*8-4*16384)//16}, v0")
o("s_mov_b64 s[62:63], vcc")
for q in range(5):
    if q == 4: o("s_mov_b64 exec, s[62:63]")
    o(f"ds_read_b128 v[{60+4*q}:{63+4*q}], v{3+q//2} offset:{(q%2)*16384}")
o("s_mov_b64 exec, -1")
for q in range(5):
    o(f"s_waitcnt lgkmcnt({4-q})")
    o(f"s_add_u32 s57, s56, {q*16384}")
    if q == 4: o("s_mov_b64 exec, s[62:63]")
    o(f"buffer_store_dwordx4 v[{60+4*q}:{63+4*q}], v2, s[40:43], s57 offen")
lab("Lp_end")
o("s_endpgm")

ROWB = 528
DEG_OFF = 48*ROWB
CTR_OFF = DEG_OFF + 48*4
out += [".globl main_kernel", ".p2align 8", ".type main_kernel,@function"]
lab("main_kernel")
o(f"s_cmp_ge_u32 s2, {NWG2}")
o("s_cbranch_scc1 Lm_end")
kernargs()
srd(28, WS, P_OFF, P_SZ)
srd(32, WS, B_OFF, B_SZ)
srd(36, WS, S_OFF, S_SZ)
srd(40, WS, L_OFF, L_SZ)
srd(44, WS, T_OFF, T_SZ)
srd(48, OUT, 0, N*D*2)
srd(52, W1, 0, 257*H*2)
srd(56, B2, 0, D*2)
o("s_mul_i32 s60, s2, 625"); o("s_lshr_b32 s60, s60, 4")
o("s_add_u32 s61, s2, 1"); o("s_mul_i32 s61, s61, 625"); o("s_lshr_b32 s61, s61, 4")
o("s_sub_u32 s61, s61, s60")
o("v_and_b32 v1, 63, v0")
o("v_lshlrev_b32 v2, 3, v1")
o("v_lshlrev_b32 v3, 4, v1")
o("v_lshlrev_b32 v4, 2, v1")
o(f"s_mov_b32 s62, {256*512}")
o("buffer_load_dwordx2 v[6:7], v2, s[52:55], s62 offen")
o("v_mov_b32 v8, 0"); o(f"v_mov_b32 v9, {CTR_OFF}")
o("v_cmp_eq_u32 vcc, 0, v0")
o("s_and_saveexec_b64 s[64:65], vcc")
o("ds_write_b32 v9, v8")
o("s_mov_b64 exec, s[64:65]")
o("s_mov_b32 s63, 0x%x" % LOG2E)
o("s_waitcnt vmcnt(0) lgkmcnt(0)")
o("v_lshlrev_b32 v10, 16, v6"); o("v_and_b32 v11, 0xffff0000, v6")
o("v_lshlrev_b32 v12, 16, v7"); o("v_and_b32 v13, 0xffff0000, v7")
for i in range(4): o(f"v_mul_f32 v{10+i}, s63, v{10+i}")
o("v_mov_b32 v8, 1")
o("s_barrier")
LST_OFF = 25600
o("v_lshrrev_b32 v5, 6, v0")
o(f"v_lshl_add_u32 v60, v5, 9, v2")
o(f"v_add_u32 v60, {LST_OFF}, v60")
o(f"v_lshlrev_b32 v61, 9, v5")
o(f"v_add_u32 v61, {LST_OFF}, v61")
o(f"v_mul_u32_u24 v62, {LP*4}, v1")
o("v_mov_b32 v56, 1.0"); o("v_mov_b32 v57, 1.0")
def fetch_node(sn, vl, vb):
    o("s_mov_b64 exec, 1")
    o("ds_add_rtn_u32 v14, v9, v8")
    o("s_waitcnt lgkmcnt(0)")
    o(f"v_readfirstlane_b32 s{sn}, v14")
    o("s_mov_b64 exec, -1")
    o(f"s_add_u32 s67, s60, s{sn}")
    o("s_lshl_b32 s68, s67, 2")
    o(f"buffer_load_dwordx2 v[{vl}:{vl+1}], v62, s[40:43], s68 offen")
    o("s_lshl_b32 s68, s67, 10")
    o(f"buffer_load_dwordx4 v[{vb}:{vb+3}], v3, s[32:35], s68 offen")
fetch_node(100, 76, 80)
lab("Lm_node")
o("s_mov_b32 s66, s100")
o("s_cmp_ge_u32 s66, s61")
o("s_cbranch_scc1 Lm_done")
o("s_waitcnt vmcnt(0)")
for i in range(2): o(f"v_mov_b32 v{28+i}, v{76+i}")
for i in range(4): o(f"v_mov_b32 v{16+i}, v{80+i}")
o("v_sub_u32 v29, v29, v28")
o("v_cmp_gt_u32 vcc, 32, v1")
o("s_nop 1")
o("v_cndmask_b32 v29, 0, v29, vcc")
o("v_lshlrev_b32 v28, 3, v28")
for r in range(4):
    o(f"v_cmp_lt_u32 vcc, {r}, v29")
    o("s_nop 3")
    o("s_mov_b64 exec, vcc")
    o(f"buffer_load_dwordx2 v[{64+2*r}:{65+2*r}], v28, s[36:39], 0 offen offset:{r*8}")
o("s_mov_b64 exec, -1")
fetch_node(100, 76, 80)
for i in range(4): o(f"v_mov_b32 v{20+i}, 0")
o("s_mov_b32 s71, 0")
o("s_mov_b32 s70, 0")
o("s_mov_b32 s69, 0")
def compact(vp):
    o("v_mbcnt_lo_u32_b32 v30, vcc_lo, 0")
    o("v_mbcnt_hi_u32_b32 v30, vcc_hi, v30")
    o("v_add_lshl_u32 v30, v30, s69, 3")
    o("v_add_u32 v30, v30, v61")
    o("s_bcnt1_i32_b64 s72, vcc")
    o("s_mov_b64 exec, vcc")
    o(f"ds_write_b64 v30, v[{vp}:{vp+1}]")
    o("s_mov_b64 exec, -1")
    o("s_add_u32 s69, s69, s72")
    o("s_add_u32 s71, s71, s72")
def call_batch():
    o("s_getpc_b64 s[80:81]")
    o("s_add_u32 s80, s80, 12"); o("s_addc_u32 s81, s81, 0")
    o("s_branch Lm_batch")
    o("s_mov_b32 s69, 0")
o("s_waitcnt vmcnt(2)")
for r in range(4):
    o(f"v_cmp_lt_u32 vcc, {r}, v29")
    o("s_cbranch_vccz Lm_last")
    compact(64+2*r)
    o("s_cmp_le_u32 s69, 32")
    o(f"s_cbranch_scc1 Lm_r{r}")
    call_batch()
    lab(f"Lm_r{r}")
o("s_mov_b32 s70, 4")
lab("Lm_rg")
o("v_cmp_lt_u32 vcc, s70, v29")
o("s_cbranch_vccz Lm_last")
o("s_lshl_b32 s72, s70, 3")
o("s_mov_b64 exec, vcc")
o("buffer_load_dwordx2 v[64:65], v28, s[36:39], s72 offen")
o("s_mov_b64 exec, -1")
o("s_waitcnt vmcnt(0)")
compact(64)
o("s_add_u32 s70, s70, 1")
o("s_cmp_le_u32 s69, 32")
o("s_cbranch_scc1 Lm_rg")
call_batch()
o("s_branch Lm_rg")
lab("Lm_last")
call_batch()
o("s_mov_b32 s68, 0x%x" % NLN2)
for i in range(4): o(f"v_mul_f32 v{20+i}, s68, v{20+i}")
o("v_cvt_pk_bf16_f32 v20, v20, v21")
o("v_cvt_pk_bf16_f32 v21, v22, v23")
o(f"s_mul_i32 s68, s66, {ROWB}")
o("v_add_u32 v26, s68, v2")
o("ds_write_b64 v26, v[20:21]")
o("s_lshl_b32 s68, s66, 2")
o(f"v_mov_b32 v26, s68")
o("v_mov_b32 v27, s71")
o(f"ds_write_b32 v26, v27 offset:{DEG_OFF}")
o("s_branch Lm_node")
lab("Lm_batch")
o("s_cmp_eq_u32 s69, 0")
o("s_cbranch_scc1 Lm_ret")
o("s_waitcnt lgkmcnt(0)")
o("ds_read_b64 v[24:25], v60")
o("s_sub_u32 s73, s69, 1")
o("s_waitcnt lgkmcnt(0)")
G = 8
def rl(k, idx):
    o(f"s_min_u32 s83, {idx}, s73")
    o(f"v_readlane_b32 s{85+2*k}, v24, s83")
    o(f"v_readlane_b32 s{84+2*k}, v25, s83")
for k in range(G): rl(k, k)
o("s_nop 4")
for k in range(G):
    o(f"buffer_load_dwordx2 v[{32+2*k}:{33+2*k}], v2, s[28:31], s{85+2*k} offen")
o("s_mov_b32 s82, 0")
lab("Lm_loop")
for k in range(G):
    p0, p1 = 32+2*k, 33+2*k
    o(f"s_waitcnt vmcnt({G-1})")
    o(f"v_lshlrev_b32 v48, 16, v{p0}"); o(f"v_and_b32 v49, 0xffff0000, v{p0}")
    o(f"v_lshlrev_b32 v50, 16, v{p1}"); o(f"v_and_b32 v51, 0xffff0000, v{p1}")
    o(f"v_pk_fma_f32 v[52:53], s[{84+2*k}:{85+2*k}], v[10:11], v[16:17] op_sel_hi:[0,1,1]")
    o(f"v_pk_fma_f32 v[54:55], s[{84+2*k}:{85+2*k}], v[12:13], v[18:19] op_sel_hi:[0,1,1]")
    o(f"s_add_u32 s83, s82, {G}")
    rl(k, "s83")
    o("v_pk_add_f32 v[48:49], v[48:49], v[52:53]")
    o("v_pk_add_f32 v[50:51], v[50:51], v[54:55]")
    for i in range(4): o(f"v_exp_f32 v{52+i}, v{48+i}")
    o(f"buffer_load_dwordx2 v[{p0}:{p1}], v2, s[28:31], s{85+2*k} offen")
    o("v_pk_add_f32 v[52:53], v[52:53], v[56:57]")
    o("v_pk_add_f32 v[54:55], v[54:55], v[56:57]")
    for i in range(4): o(f"v_rcp_f32 v{52+i}, v{52+i}")
    o("s_add_u32 s82, s82, 1")
    o("v_pk_fma_f32 v[20:21], v[48:49], v[52:53], v[20:21]")
    o("v_pk_fma_f32 v[22:23], v[50:51], v[54:55], v[22:23]")
    o("s_cmp_ge_u32 s82, s69")
    o("s_cbranch_scc1 Lm_ret")
o("s_branch Lm_loop")
lab("Lm_ret")
o("s_setpc_b64 s[80:81]")
lab("Lm_done")
o("s_waitcnt lgkmcnt(0)")
o("s_barrier")
o("v_lshrrev_b32 v5, 6, v0"); o("s_nop 1")
o("v_readfirstlane_b32 s66, v5")
o("v_and_b32 v6, 15, v1")
o("v_lshrrev_b32 v7, 4, v1")
lab("Lm_tile")
o("s_cmp_ge_u32 s66, 24")
o("s_cbranch_scc1 Lm_end")
o("s_lshr_b32 s67, s66, 3")
o("s_and_b32 s68, s66, 7")
o("s_lshl_b32 s69, s68, 4")
o("v_add_u32 v8, s69, v6")
o("v_lshlrev_b32 v9, 9, v8")
o("v_lshl_add_u32 v9, v7, 4, v9")
for st in range(8):
    o(f"buffer_load_dwordx4 v[{32+4*st}:{35+4*st}], v9, s[44:47], 0 offen offset:{st*64}")
o("v_lshlrev_b32 v10, 1, v8")
o("buffer_load_ushort v11, v10, s[56:59], 0 offen")
o("s_lshl_b32 s69, s67, 4")
o("v_add_u32 v12, s69, v6")
o(f"v_mul_u32_u24 v12, {ROWB}, v12")
o("v_lshl_add_u32 v12, v7, 4, v12")
for st in range(8):
    o(f"ds_read_b128 v[{64+4*st}:{67+4*st}], v12 offset:{st*64}")
o("v_lshl_add_u32 v13, v7, 2, s69")
o("v_lshlrev_b32 v14, 2, v13")
o(f"ds_read_b128 v[24:27], v14 offset:{DEG_OFF}")
for i in range(4): o(f"v_mov_b32 v{20+i}, 0")
o("s_waitcnt vmcnt(0) lgkmcnt(0)")
for st in range(8):
    o(f"v_mfma_f32_16x16x32_bf16 v[20:23], v[{64+4*st}:{67+4*st}], v[{32+4*st}:{35+4*st}], v[20:23]")
o("v_lshlrev_b32 v11, 16, v11")
o("s_nop 6")
for i in range(4):
    o(f"v_cvt_f32_u32 v{24+i}, v{24+i}")
    o(f"v_fma_f32 v{20+i}, v{24+i}, v11, v{20+i}")
    o(f"v_cvt_pk_bf16_f32 v{20+i}, v{20+i}, v{20+i}")
o("v_add_u32 v15, s60, v13")
o("v_lshlrev_b32 v15, 8, v15")
o("v_add_u32 v15, v15, v10"); o("v_mov_b32 v18, 0x7fff0000")
for i in range(4):
    o(f"v_add_u32 v16, {i}, v13")
    o("v_cmp_gt_u32 vcc, s61, v16")
    o("s_nop 1")
    o("v_cndmask_b32 v17, v18, v15, vcc")
    o(f"buffer_store_short v{20+i}, v17, s[48:51], 0 offen offset:{i*256}")
o("s_add_u32 s66, s66, 16")
o("s_branch Lm_tile")
lab("Lm_end")
o("s_endpgm")

out.append('.section .rodata,"a"')
for k in ("prep_kernel", "main_kernel"):
    out += [".p2align 6", f".amdhsa_kernel {k}",
            "  .amdhsa_next_free_vgpr 128", "  .amdhsa_next_free_sgpr 102",
            "  .amdhsa_accum_offset 128", "  .amdhsa_group_segment_fixed_size 0",
            "  .amdhsa_kernarg_size 88", "  .amdhsa_user_sgpr_count 2",
            "  .amdhsa_user_sgpr_kernarg_segment_ptr 1",
            "  .amdhsa_system_sgpr_workgroup_id_x 1", ".end_amdhsa_kernel"]
dst = sys.argv[1] if len(sys.argv) > 1 else 'gather_scatter__edge_featured_mpnn_mpnn__graph.s'
open(dst, 'w').write("\n".join(out) + "\n")
```

```python
import sys, os
XP=os.environ.get("XP","")
N, E, D, H = 10000, 320000, 128, 256
W = 32; C = E // W; LP = 10240
P_OFF = 0;            P_SZ = N*H*2
B_OFF = P_OFF+P_SZ;   B_SZ = N*H*4
S_OFF = B_OFF+B_SZ;   S_SZ = E*8
L_OFF = S_OFF+S_SZ;   L_SZ = W*LP*4
T_OFF = (L_OFF+L_SZ+255)//256*256; T_SZ = D*H*2
NG = (N+63)//64
NWG1 = W + 1 + NG
NWG2 = 512
LOG2E = 0xbfb8aa3b
NLN2 = 0xbf317218
out = []
def o(s): out.append("    " + s)
def lab(s): out.append(s + ":")
def srd(d, blo, off, size):
    o(f"s_add_u32 s{d}, s{blo}, {off}")
    o(f"s_addc_u32 s{d+1}, s{blo+1}, 0")
    o(f"s_mov_b32 s{d+2}, {size}")
    o(f"s_mov_b32 s{d+3}, 0x20000")
def kernargs():
    o("s_load_dwordx16 s[4:19], s[0:1], 0")
    o("s_load_dwordx4 s[20:23], s[0:1], 64")
    o("s_load_dwordx2 s[24:25], s[0:1], 80")
    o("s_waitcnt lgkmcnt(0)")
X, EA, SRC, DST, W1, B1, W2, B2, OUT, DBG, WS = 4, 6, 8, 10, 12, 14, 16, 18, 20, 22, 24

hdr = open('gather_scatter__edge_featured_mpnn_mpnn__graph.s.ref').read().split('\n')
lines = [l for l in hdr[:13] if l.startswith(';')][:12]
out += lines
out.append(f"; @launch kernel=prep_kernel grid=({NWG1},1,1) block=(1024,1,1) lds=120320")
out.append(f"; @launch kernel=main_kernel grid=({NWG2},1,1) block=(1024,1,1) lds=33792")
out.append('.amdgcn_target "amdgcn-amd-amdhsa--gfx950"')
out.append(".text")

out += [".globl prep_kernel", ".p2align 8", ".type prep_kernel,@function"]
lab("prep_kernel")
o(f"s_cmp_ge_u32 s2, {NWG1}")
o("s_cbranch_scc1 Lp_end")
kernargs()
o(f"s_cmp_lt_u32 s2, {W}")
o("s_cbranch_scc1 Lp_sort")
o(f"s_cmp_eq_u32 s2, {W}")
o("s_cbranch_scc1 Lp_tr")
o(f"s_sub_u32 s3, s2, {W+1}")
srd(28, X, 0, N*D*2)
srd(32, W1, 0, 257*H*2)
srd(36, WS, P_OFF, P_SZ)
srd(40, WS, B_OFF, B_SZ)
srd(44, B1, 0, H*2)
o("v_and_b32 v1, 63, v0")
o("v_lshrrev_b32 v2, 6, v0")
o("v_and_b32 v3, 31, v1")
o("v_lshrrev_b32 v4, 5, v1")
o("v_lshl_add_u32 v5, v2, 5, v3")
o("v_lshlrev_b32 v6, 12, v4")
o("v_lshl_add_u32 v6, v5, 1, v6")
o("v_lshrrev_b32 v7, 3, v2")
o("v_mul_u32_u24 v7, 65024, v7")
o("v_add_u32 v6, v6, v7")
for step in range(8):
    o(f"s_mov_b32 s50, {step*8192}")
    for j in range(8):
        o(f"buffer_load_ushort v{64+step*8+j}, v6, s[32:35], s50 offen offset:{j*512}")
o("v_lshlrev_b32 v7, 1, v5")
o("v_subrev_u32 v7, 512, v7")
o("buffer_load_ushort v8, v7, s[44:47], 0 offen")
o("v_readfirstlane_b32 s51, v2")
o("s_waitcnt vmcnt(0)")
for i in range(32): o(f"v_lshl_or_b32 v{64+i}, v{65+2*i}, 16, v{64+2*i}")
o("s_mov_b32 s52, 0x%x" % LOG2E)
for rt in range(2):
    o("s_lshl_b32 s53, s3, 6")
    if rt: o("s_add_u32 s53, s53, 32")
    o("v_add_u32 v9, s53, v3")
    o("v_lshlrev_b32 v9, 8, v9")
    o("v_lshl_add_u32 v9, v4, 4, v9")
    for step in range(8):
        o(f"buffer_load_dwordx4 v[{32+step*4}:{35+step*4}], v9, s[28:31], 0 offen offset:{step*32}")
    for i in range(16): o(f"v_mov_b32 v{16+i}, 0")
    o("s_waitcnt vmcnt(0)")
    for step in range(8):
        o(f"v_mfma_f32_32x32x16_bf16 v[16:31], v[{32+step*4}:{35+step*4}], v[{64+step*4}:{67+step*4}], v[16:31]")
    o("s_nop 15"); o("s_nop 3")
    o("v_lshl_add_u32 v10, v4, 2, s53")
    o("s_cmp_ge_u32 s51, 8")
    o(f"s_cbranch_scc1 Lp_base{rt}")
    o("v_lshlrev_b32 v11, 9, v10")
    o("v_lshl_add_u32 v11, v5, 1, v11")
    for i in range(16):
        o(f"v_mul_f32 v{16+i}, s52, v{16+i}")
    for i in range(16):
        o(f"v_cvt_pk_bf16_f32 v{16+i}, v{16+i}, v{16+i}")
    for i in range(16):
        r = (i//4)*8 + (i % 4)
        o(f"s_mov_b32 s54, {r*512}")
        o(f"buffer_store_short v{16+i}, v11, s[36:39], s54 offen")
    o(f"s_branch Lp_next{rt}")
    lab(f"Lp_base{rt}")
    o("v_lshlrev_b32 v12, 16, v8")
    o("v_lshlrev_b32 v11, 10, v10")
    o("v_lshl_add_u32 v11, v5, 2, v11")
    o("v_subrev_u32 v11, 1024, v11")
    for i in range(16):
        o(f"v_add_f32 v{16+i}, v{16+i}, v12")
        o(f"v_mul_f32 v{16+i}, s52, v{16+i}")
    for i in range(16):
        r = (i//4)*8 + (i % 4)
        o(f"s_mov_b32 s54, {r*1024}")
        o(f"buffer_store_dword v{16+i}, v11, s[40:43], s54 offen")
    lab(f"Lp_next{rt}")
o("s_endpgm")
lab("Lp_tr")
srd(28, W2, 0, H*D*2)
srd(32, WS, T_OFF, T_SZ)
o("v_and_b32 v1, 127, v0")
o("v_lshrrev_b32 v2, 7, v0")
o("v_lshlrev_b32 v3, 13, v2")
o("v_lshl_add_u32 v3, v1, 1, v3")
for j in range(32):
    if j % 16 == 0: o(f"s_mov_b32 s50, {j*256}")
    o(f"buffer_load_ushort v{16+j}, v3, s[28:31], s50 offen offset:{(j%16)*256}")
o("v_lshlrev_b32 v4, 9, v1")
o("v_lshl_add_u32 v4, v2, 6, v4")
o("s_waitcnt vmcnt(0)")
for i in range(16): o(f"v_lshl_or_b32 v{16+i}, v{17+2*i}, 16, v{16+2*i}")
for q in range(4):
    o(f"buffer_store_dwordx4 v[{16+4*q}:{19+4*q}], v4, s[32:35], 0 offen offset:{q*16}")
o("s_endpgm")
lab("Lp_sort")
srd(28, DST, 0, E*4)
srd(32, SRC, 0, E*4)
srd(36, EA, 0, E*2)
srd(40, WS, S_OFF, S_SZ)
srd(44, WS, L_OFF, L_SZ)
NI = (C + 1023)//1024
LASTN = C - (NI-1)*1024
o("v_mov_b32 v100, 0"); o("v_mov_b32 v101, 0")
o("v_mul_u32_u24 v1, 40, v0")
o("v_cmp_gt_u32 vcc, 1000, v0")
o("s_and_saveexec_b64 s[60:61], vcc")
for q in range(5): o(f"ds_write_b64 v1, v[100:101] offset:{q*8}")
o("s_mov_b64 exec, s[60:61]")
o(f"s_mul_i32 s50, s2, {C*4}")
o("v_lshlrev_b32 v2, 2, v0")
o("v_lshlrev_b32 v3, 1, v0")
o(f"v_cmp_gt_u32 vcc, {LASTN}, v0")
o("s_mov_b64 s[62:63], vcc")
def masked(i, f):
    if i == NI-1:
        o("s_mov_b64 exec, s[62:63]"); f(); o("s_mov_b64 exec, -1")
    else: f()
for i in range(NI):
    o(f"s_add_u32 s51, s50, {i*4096}")
    masked(i, lambda: o(f"buffer_load_dword v{20+i}, v2, s[28:31], s51 offen"))
o("v_mov_b32 v5, 1")
o("s_waitcnt lgkmcnt(0)")
o("s_barrier")
for i in range(NI):
    o(f"s_waitcnt vmcnt({NI-1-i})")
    o(f"v_lshlrev_b32 v{20+i}, 2, v{20+i}")
    masked(i, lambda: o(f"ds_add_rtn_u32 v{40+i}, v{20+i}, v5"))
o("s_lshr_b32 s52, s50, 1")
for i in range(NI):
    o(f"s_add_u32 s51, s50, {i*4096}")
    o(f"s_add_u32 s53, s52, {i*2048}")
    masked(i, lambda: (o(f"buffer_load_dword v{30+i}, v2, s[32:35], s51 offen"),
                       o(f"buffer_load_ushort v{80+i}, v3, s[36:39], s53 offen")))
o("s_waitcnt lgkmcnt(0)")
o("s_barrier")
o("v_mov_b32 v6, 0")
o("v_cmp_gt_u32 vcc, 1000, v0")
o("s_and_saveexec_b64 s[60:61], vcc")
for q in range(5): o(f"ds_read_b64 v[{100+2*q}:{101+2*q}], v1 offset:{q*8}")
o("s_waitcnt lgkmcnt(0)")
for i in range(10):
    o(f"v_mov_b32 v7, v{100+i}")
    o(f"v_mov_b32 v{100+i}, v6")
    o("v_add_u32 v6, v6, v7")
o("s_mov_b64 exec, s[60:61]")
o("v_mov_b32 v8, v6")
def scan64(r, rows_only=False):
    for sh in (1, 2, 4, 8):
        o("s_nop 1")
        o(f"v_add_u32_dpp v{r}, v{r}, v{r} row_shr:{sh} row_mask:0xf bank_mask:0xf bound_ctrl:0")
    if not rows_only:
        o("s_nop 1")
        o(f"v_add_u32_dpp v{r}, v{r}, v{r} row_bcast:15 row_mask:0xa bank_mask:0xf")
        o("s_nop 1")
        o(f"v_add_u32_dpp v{r}, v{r}, v{r} row_bcast:31 row_mask:0xc bank_mask:0xf")
scan64(8)
o("v_lshrrev_b32 v9, 6, v0")
o("v_lshlrev_b32 v10, 2, v9")
o("v_and_b32 v11, 63, v0")
o("v_cmp_eq_u32 vcc, 63, v11")
o("s_and_saveexec_b64 s[60:61], vcc")
o("ds_write_b32 v10, v8 offset:40000")
o("s_mov_b64 exec, s[60:61]")
o("v_sub_u32 v8, v8, v6")
o("s_waitcnt lgkmcnt(0)")
o("s_barrier")
o("v_and_b32 v12, 15, v0")
o("v_lshlrev_b32 v13, 2, v12")
o("ds_read_b32 v14, v13 offset:40000")
o("v_cmp_gt_u32 vcc, v9, v12")
o("s_waitcnt lgkmcnt(0)")
o("v_cndmask_b32 v14, 0, v14, vcc")
scan64(14, rows_only=True)
o("s_nop 1")
o("v_readlane_b32 s54, v14, 15")
o("s_nop 3")
o("v_add_u32 v8, s54, v8")
o(f"s_mul_i32 s55, s2, {C}")
o("v_cmp_gt_u32 vcc, 1000, v0")
o("s_and_saveexec_b64 s[60:61], vcc")
for i in range(10): o(f"v_add_u32 v{100+i}, v{100+i}, v8")
for q in range(5): o(f"ds_write_b64 v1, v[{100+2*q}:{101+2*q}] offset:{q*8}")
o(f"s_mul_i32 s56, s2, {LP*4}")
for q in range(5):
    o(f"v_add_u32 v{100+2*q}, s55, v{100+2*q}")
    o(f"v_add_u32 v{101+2*q}, s55, v{101+2*q}")
    o(f"buffer_store_dwordx2 v[{100+2*q}:{101+2*q}], v1, s[44:47], s56 offen offset:{q*8}")
o("s_mov_b64 exec, s[60:61]")
o(f"s_add_u32 s57, s55, {C}")
o("v_mov_b32 v16, s57")
o(f"v_mov_b32 v17, {N*4}")
o("v_cmp_eq_u32 vcc, 0, v0")
o("s_and_saveexec_b64 s[60:61], vcc")
o("buffer_store_dword v16, v17, s[44:47], s56 offen")
o("s_mov_b64 exec, s[60:61]")
o("s_waitcnt lgkmcnt(0)")
o("s_barrier")
for i in range(NI):
    masked(i, lambda: o(f"ds_read_b32 v{100+i}, v{20+i}"))
o("s_waitcnt vmcnt(0)")
for i in range(NI):
    o(f"s_waitcnt lgkmcnt({min(15,NI-1-i)})")
    o(f"v_add_lshl_u32 v{100+i}, v{100+i}, v{40+i}, 3")
    o(f"v_lshlrev_b32 v{60+2*i}, 9, v{30+i}")
    o(f"v_lshlrev_b32 v{61+2*i}, 16, v{80+i}")
    masked(i, lambda: o(f"ds_write_b64 v{100+i}, v[{60+2*i}:{61+2*i}] offset:40320"))
o("s_waitcnt lgkmcnt(0)")
o("s_barrier")
o("v_lshlrev_b32 v2, 4, v0")
o(f"s_mul_i32 s56, s2, {C*8}")
o("v_add_u32 v3, 40320, v2")
o("v_add_u32 v4, 0x8000, v3"); o("v_add_u32 v5, 0x8000, v4")
o(f"v_cmp_gt_u32 vcc, {(C*8-4*16384)//16}, v0")
o("s_mov_b64 s[62:63], vcc")
for q in range(5):
    if q == 4: o("s_mov_b64 exec, s[62:63]")
    o(f"ds_read_b128 v[{60+4*q}:{63+4*q}], v{3+q//2} offset:{(q%2)*16384}")
o("s_mov_b64 exec, -1")
for q in range(5):
    o(f"s_waitcnt lgkmcnt({4-q})")
    o(f"s_add_u32 s57, s56, {q*16384}")
    if q == 4: o("s_mov_b64 exec, s[62:63]")
    o(f"buffer_store_dwordx4 v[{60+4*q}:{63+4*q}], v2, s[40:43], s57 offen")
lab("Lp_end")
o("s_endpgm")

ROWB = 528
DEG_OFF = 48*ROWB
CTR_OFF = DEG_OFF + 48*4
out += [".globl main_kernel", ".p2align 8", ".type main_kernel,@function"]
lab("main_kernel")
o(f"s_cmp_ge_u32 s2, {NWG2}")
o("s_cbranch_scc1 Lm_end")
kernargs()
srd(28, WS, P_OFF, P_SZ)
srd(32, WS, B_OFF, B_SZ)
srd(36, WS, S_OFF, S_SZ)
srd(40, WS, L_OFF, L_SZ)
srd(44, WS, T_OFF, T_SZ)
srd(48, OUT, 0, N*D*2)
srd(52, W1, 0, 257*H*2)
srd(56, B2, 0, D*2)
o("s_mul_i32 s60, s2, 625"); o("s_lshr_b32 s60, s60, 5")
o("s_add_u32 s61, s2, 1"); o("s_mul_i32 s61, s61, 625"); o("s_lshr_b32 s61, s61, 5")
o("s_sub_u32 s61, s61, s60")
o("v_and_b32 v1, 63, v0")
o("v_lshlrev_b32 v2, 3, v1")
o("v_lshlrev_b32 v3, 4, v1")
o(f"s_mov_b32 s62, {256*512}")
o("buffer_load_dwordx2 v[6:7], v2, s[52:55], s62 offen")
o("v_mov_b32 v8, 0"); o(f"v_mov_b32 v9, {CTR_OFF}")
o("v_cmp_eq_u32 vcc, 0, v0")
o("s_and_saveexec_b64 s[64:65], vcc")
o("ds_write_b32 v9, v8")
o("s_mov_b64 exec, s[64:65]")
o("s_mov_b32 s63, 0x%x" % LOG2E)
o("s_waitcnt vmcnt(0) lgkmcnt(0)")
o("v_lshlrev_b32 v10, 16, v6"); o("v_and_b32 v11, 0xffff0000, v6")
o("v_lshlrev_b32 v12, 16, v7"); o("v_and_b32 v13, 0xffff0000, v7")
for i in range(4): o(f"v_mul_f32 v{10+i}, s63, v{10+i}")
o("v_mov_b32 v8, 1")
o("s_barrier")
RR=[58,60,62,14]
LST_OFF = 25600
o("v_lshrrev_b32 v7, 6, v0")
o(f"v_lshl_add_u32 v4, v7, 9, v2")
o(f"v_add_u32 v4, {LST_OFF}, v4")
o(f"v_lshlrev_b32 v5, 9, v7")
o(f"v_add_u32 v5, {LST_OFF}, v5")
o(f"v_mul_u32_u24 v6, {LP*4}, v1")
o("v_mov_b32 v56, 1.0"); o("v_mov_b32 v57, 1.0")
def fetch_node(sn, vl, vb):
    o("s_mov_b64 exec, 1")
    o("ds_add_rtn_u32 v7, v9, v8")
    o("s_waitcnt lgkmcnt(0)")
    o(f"v_readfirstlane_b32 s{sn}, v7")
    o("s_mov_b64 exec, -1")
    o(f"s_add_u32 s67, s60, s{sn}")
    o("s_lshl_b32 s68, s67, 2")
    o(f"buffer_load_dwordx2 v[{vl}:{vl+1}], v6, s[40:43], s68 offen")
fetch_node(100, 30, 0)
lab("Lm_node")
o("s_mov_b32 s66, s100")
o("s_cmp_ge_u32 s66, s61")
o("s_cbranch_scc1 Lm_done")
o("s_waitcnt vmcnt(0)")
for i in range(2): o(f"v_mov_b32 v{28+i}, v{30+i}")
o("s_add_u32 s67, s60, s66")
o("s_lshl_b32 s68, s67, 10")
o("buffer_load_dwordx4 v[16:19], v3, s[32:35], s68 offen")
o("v_sub_u32 v29, v29, v28")
o("v_cmp_gt_u32 vcc, 32, v1")
o("s_nop 1")
o("v_cndmask_b32 v29, 0, v29, vcc")
o("v_lshlrev_b32 v28, 3, v28")
for r in range(4):
    o(f"v_cmp_lt_u32 vcc, {r}, v29")
    o("s_nop 3")
    o("s_mov_b64 exec, vcc")
    o(f"buffer_load_dwordx2 v[{RR[r]}:{RR[r]+1}], v28, s[36:39], 0 offen offset:{r*8}")
o("s_mov_b64 exec, -1")
fetch_node(100, 30, 0)
for i in range(4): o(f"v_mov_b32 v{20+i}, 0")
o("s_mov_b32 s71, 0")
o("s_mov_b32 s70, 0")
o("s_mov_b32 s69, 0")
def compact(vp):
    o("v_mbcnt_lo_u32_b32 v26, vcc_lo, 0")
    o("v_mbcnt_hi_u32_b32 v26, vcc_hi, v26")
    o("v_add_lshl_u32 v26, v26, s69, 3")
    o("v_add_u32 v26, v26, v5")
    o("s_bcnt1_i32_b64 s72, vcc")
    o("s_mov_b64 exec, vcc")
    o(f"ds_write_b64 v26, v[{vp}:{vp+1}]")
    o("s_mov_b64 exec, -1")
    o("s_add_u32 s69, s69, s72")
    o("s_add_u32 s71, s71, s72")
def call_batch():
    o("s_getpc_b64 s[80:81]")
    o("s_add_u32 s80, s80, 12"); o("s_addc_u32 s81, s81, 0")
    o("s_branch Lm_batch")
    o("s_mov_b32 s69, 0")
o("s_waitcnt vmcnt(1)")
for r in range(4):
    o(f"v_cmp_lt_u32 vcc, {r}, v29")
    o("s_cbranch_vccz Lm_last")
    compact(RR[r])
    o("s_cmp_le_u32 s69, 32")
    o(f"s_cbranch_scc1 Lm_r{r}")
    call_batch()
    lab(f"Lm_r{r}")
o("s_mov_b32 s70, 4")
lab("Lm_rg")
o("v_cmp_lt_u32 vcc, s70, v29")
o("s_cbranch_vccz Lm_last")
o("s_lshl_b32 s72, s70, 3")
o("s_mov_b64 exec, vcc")
o("buffer_load_dwordx2 v[58:59], v28, s[36:39], s72 offen")
o("s_mov_b64 exec, -1")
o("s_waitcnt vmcnt(0)")
compact(58)
o("s_add_u32 s70, s70, 1")
o("s_cmp_le_u32 s69, 32")
o("s_cbranch_scc1 Lm_rg")
call_batch()
o("s_branch Lm_rg")
lab("Lm_last")
call_batch()
o("s_mov_b32 s68, 0x%x" % NLN2)
for i in range(4): o(f"v_mul_f32 v{20+i}, s68, v{20+i}")
o("v_cvt_pk_bf16_f32 v20, v20, v21")
o("v_cvt_pk_bf16_f32 v21, v22, v23")
o(f"s_mul_i32 s68, s66, {ROWB}")
o("v_add_u32 v26, s68, v2")
o("ds_write_b64 v26, v[20:21]")
o("s_lshl_b32 s68, s66, 2")
o(f"v_mov_b32 v26, s68")
o("v_mov_b32 v27, s71")
o(f"ds_write_b32 v26, v27 offset:{DEG_OFF}")
o("s_branch Lm_node")
lab("Lm_batch")
o("s_cmp_eq_u32 s69, 0")
o("s_cbranch_scc1 Lm_ret")
o("s_waitcnt lgkmcnt(0)")
o("ds_read_b64 v[24:25], v4")
o("s_sub_u32 s73, s69, 1")
o("s_waitcnt lgkmcnt(0)")
G = 8
def rl(k, idx):
    o(f"s_min_u32 s83, {idx}, s73")
    o(f"v_readlane_b32 s{85+2*k}, v24, s83")
    o(f"v_readlane_b32 s{84+2*k}, v25, s83")
for k in range(G): rl(k, k)
o("s_nop 4")
for k in range(G):
    o(f"buffer_load_dwordx2 v[{32+2*k}:{33+2*k}], v2, s[28:31], s{85+2*k} offen")
o("s_mov_b32 s82, 0")
lab("Lm_loop")
for k in range(G):
    p0, p1 = 32+2*k, 33+2*k
    o(f"s_waitcnt vmcnt({G-1})")
    o(f"v_lshlrev_b32 v48, 16, v{p0}"); o(f"v_and_b32 v49, 0xffff0000, v{p0}")
    o(f"v_lshlrev_b32 v50, 16, v{p1}"); o(f"v_and_b32 v51, 0xffff0000, v{p1}")
    o(f"v_pk_fma_f32 v[52:53], s[{84+2*k}:{85+2*k}], v[10:11], v[16:17] op_sel_hi:[0,1,1]")
    o(f"v_pk_fma_f32 v[54:55], s[{84+2*k}:{85+2*k}], v[12:13], v[18:19] op_sel_hi:[0,1,1]")
    o(f"s_add_u32 s83, s82, {G}")
    rl(k, "s83")
    o("v_pk_add_f32 v[48:49], v[48:49], v[52:53]")
    o("v_pk_add_f32 v[50:51], v[50:51], v[54:55]")
    for i in range(4): o(f"{'v_mov_b32' if XP=='A' else 'v_exp_f32'} v{52+i}, v{48+i}")
    if XP=='B': o(f"buffer_load_dwordx2 v[{p0}:{p1}], v2, s[28:31], 0 offen")
    else: o(f"buffer_load_dwordx2 v[{p0}:{p1}], v2, s[28:31], s{85+2*k} offen")
    o("v_pk_add_f32 v[52:53], v[52:53], v[56:57]")
    o("v_pk_add_f32 v[54:55], v[54:55], v[56:57]")
    for i in range(4): o(f"{'v_mov_b32' if XP=='A' else 'v_rcp_f32'} v{52+i}, v{52+i}")
    o("s_add_u32 s82, s82, 1")
    o("v_pk_fma_f32 v[20:21], v[48:49], v[52:53], v[20:21]")
    o("v_pk_fma_f32 v[22:23], v[50:51], v[54:55], v[22:23]")
    o("s_cmp_ge_u32 s82, s69")
    o("s_cbranch_scc1 Lm_ret")
o("s_branch Lm_loop")
lab("Lm_ret")
o("s_setpc_b64 s[80:81]")
lab("Lm_done")
o("s_waitcnt lgkmcnt(0)")
o("s_barrier")
o("v_lshrrev_b32 v5, 6, v0"); o("s_nop 1")
o("v_readfirstlane_b32 s66, v5")
o("v_and_b32 v6, 15, v1")
o("v_lshrrev_b32 v7, 4, v1")
lab("Lm_tile")
o("s_lshr_b32 s67, s66, 3")
o("s_and_b32 s68, s66, 7")
o("s_lshl_b32 s69, s68, 4")
o("v_add_u32 v8, s69, v6")
o("v_lshlrev_b32 v9, 9, v8")
o("v_lshl_add_u32 v9, v7, 4, v9")
o("v_lshlrev_b32 v10, 1, v8")
o("buffer_load_ushort v11, v10, s[56:59], 0 offen")
o("s_lshl_b32 s69, s67, 4")
o("v_add_u32 v12, s69, v6")
o(f"v_mul_u32_u24 v12, {ROWB}, v12")
o("v_lshl_add_u32 v12, v7, 4, v12")
o("v_lshl_add_u32 v13, v7, 2, s69")
o("v_lshlrev_b32 v14, 2, v13")
o(f"ds_read_b128 v[24:27], v14 offset:{DEG_OFF}")
for i in range(4): o(f"v_mov_b32 v{20+i}, 0")
for hf in range(2):
    for st in range(4):
        o(f"buffer_load_dwordx4 v[{32+4*st}:{35+4*st}], v9, s[44:47], 0 offen offset:{(hf*4+st)*64}")
        o(f"ds_read_b128 v[{48+4*st}:{51+4*st}], v12 offset:{(hf*4+st)*64}")
    o("s_waitcnt vmcnt(0) lgkmcnt(0)")
    for st in range(4):
        o(f"v_mfma_f32_16x16x32_bf16 v[20:23], v[{48+4*st}:{51+4*st}], v[{32+4*st}:{35+4*st}], v[20:23]")
    o("s_nop 7")
o("v_lshlrev_b32 v11, 16, v11")
o("s_nop 6")
for i in range(4):
    o(f"v_cvt_f32_u32 v{24+i}, v{24+i}")
    o(f"v_fma_f32 v{20+i}, v{24+i}, v11, v{20+i}")
    o(f"v_cvt_pk_bf16_f32 v{20+i}, v{20+i}, v{20+i}")
o("v_add_u32 v15, s60, v13")
o("v_lshlrev_b32 v15, 8, v15")
o("v_add_u32 v15, v15, v10"); o("v_mov_b32 v18, 0x7fff0000")
for i in range(4):
    o(f"v_add_u32 v16, {i}, v13")
    o("v_cmp_gt_u32 vcc, s61, v16")
    o("s_nop 1")
    o("v_cndmask_b32 v17, v18, v15, vcc")
    o(f"buffer_store_short v{20+i}, v17, s[48:51], 0 offen offset:{i*256}")
lab("Lm_end")
o("s_endpgm")

out.append('.section .rodata,"a"')
for k in ("prep_kernel", "main_kernel"):
    out += [".p2align 6", f".amdhsa_kernel {k}",
            f"  .amdhsa_next_free_vgpr {128 if k=='prep_kernel' else 64}", "  .amdhsa_next_free_sgpr 102",
            f"  .amdhsa_accum_offset {128 if k=='prep_kernel' else 64}", "  .amdhsa_group_segment_fixed_size 0",
            "  .amdhsa_kernarg_size 88", "  .amdhsa_user_sgpr_count 2",
            "  .amdhsa_user_sgpr_kernarg_segment_ptr 1",
            "  .amdhsa_system_sgpr_workgroup_id_x 1", ".end_amdhsa_kernel"]
dst = sys.argv[1] if len(sys.argv) > 1 else 'gather_scatter__edge_featured_mpnn_mpnn__graph.s'
open(dst, 'w').write("\n".join(out) + "\n")
```
